```python
import torch

def _softmax(x, axis=-1):
    return torch.softmax(x, dim=axis)
def _gelu(x):
    return torch.nn.functional.gelu(x, approximate="tanh")
def _silu(x):
    return torch.nn.functional.silu(x)
def _sigmoid(x):
    return torch.sigmoid(x)
def _layernorm(x, axis=-1, eps=1e-5):
    m = x.mean(dim=axis, keepdim=True)
    v = x.var(dim=axis, keepdim=True, unbiased=False)
    return (x - m) / torch.sqrt(v + eps)
def _scatter_add(tgt, idx, src, axis=0):
    return tgt.clone().index_add_(axis, idx, src)
def _segment_sum(src, seg, n):
    out = torch.zeros((n,) + src.shape[1:], dtype=src.dtype)
    return out.index_add_(0, seg, src)
def _pad(x, pw):
    flat = tuple(v for pair in reversed(pw) for v in pair)
    return torch.nn.functional.pad(x, flat)

kernel_name = 'standalone__gqa_softmax__sampling'

def setup_inputs():

    _w = (lambda a: (lambda t: t.to(torch.bfloat16) if t.is_floating_point() else t)(torch.as_tensor(a)))
    B, Hq, Hkv, Sq, Sk, D = 8, 32, 8, 8, 2048, 128
    return {
        "q": _w((lambda *s: torch.randn(*s, dtype=torch.bfloat16) * 0.8)(B, Hq, Sq, D)),
        "k": _w((lambda *s: torch.randn(*s, dtype=torch.bfloat16) * 0.8)(B, Hkv, Sk, D)),
        "v": _w((lambda *s: torch.randn(*s, dtype=torch.bfloat16) * 0.05)(B, Hkv, Sk, D)),
    }

def reference(q, k, v):
    B, Hq, Sq, D = q.shape
    Hkv = k.shape[1]
    rep = Hq // Hkv
    k = (lambda x, n, axis: torch.repeat_interleave(x, n, dim=axis))(k, rep, axis=1)
    v = (lambda x, n, axis: torch.repeat_interleave(x, n, dim=axis))(v, rep, axis=1)
    scale = D ** -0.5
    scores = torch.einsum("bhqd,bhkd->bhqk", q, k) * scale
    p = _softmax(scores, axis=-1)
    return torch.einsum("bhqk,bhkd->bhqd", p, v)
```

```python
import re
REG_RE = re.compile(r'(?<![\w.])([vas])\[(\d+):(\d+)\]|(?<![\w.\[])([vas])(\d+)(?![\w:\]])|(?<![\w.])(vcc_lo|vcc_hi|vcc|exec_lo|exec_hi|exec|m0|scc)(?![\w])')
TRANS = ('v_exp_f32','v_log_f32','v_rcp_f32','v_rsq_f32','v_sqrt_f32','v_sin_f32','v_cos_f32','v_rcp_iflag_f32')

def regs_of(opnd):
    out=set()
    for m in REG_RE.finditer(opnd):
        if m.group(1):
            for i in range(int(m.group(2)), int(m.group(3))+1): out.add(m.group(1)+str(i))
        elif m.group(4): out.add(m.group(4)+m.group(5))
        else:
            g=m.group(6)
            if g.startswith('vcc'): out.add('vcc')
            elif g.startswith('exec'): out.add('exec')
            else: out.add(g)
    return out

def split_ops(s):
    out=[];d=0;cur=''
    for ch in s:
        if ch=='[': d+=1
        if ch==']': d-=1
        if ch==',' and d==0: out.append(cur.strip()); cur=''
        else: cur+=ch
    if cur.strip(): out.append(cur.strip())
    return out

class Ins:
    def __init__(s, text):
        s.text=text
        t=text.split(';')[0].strip()
        parts=t.split(None,1)
        s.op=parts[0]; rest=parts[1] if len(parts)>1 else ''
        s.ops=split_ops(rest)
        op=s.op
        s.kind='other'; s.w=set(); s.r=set(); s.ws=1
        s.A=s.B=s.C=set(); s.passes=0; s.storedata=set(); s.wide=False; s.lds_dma=False
        s.dpp = ('row_' in t or 'quad_perm' in t or 'wave_' in t or 'dpp' in op)
        R=[regs_of(o) for o in s.ops]
        allr=set().union(*R) if R else set()
        if op=='s_nop':
            s.kind='nop'; s.ws=int(s.ops[0],0)+1
        elif op.startswith('v_mfma'):
            s.kind='mfma'; s.w=R[0]; s.A=R[1]; s.B=R[2]; s.C=R[3]; s.r=s.A|s.B|s.C
            s.passes = 8 if '32x32x16' in op else 4 if '16x16x32' in op else 4 if '16x16x16' in op else 8 if '32x32x8' in op else 16
        elif op.startswith('v_'):
            s.kind='valu'
            s.w=set(R[0]); s.r=set().union(*R[1:]) if len(R)>1 else set()
            if 'permlane' in op and 'swap' in op: s.w=R[0]|R[1]; s.r=R[0]|R[1]
            if op.startswith('v_fmac') or op.startswith('v_pk_fmac') or 'dot2c' in op or op.startswith('v_writelane'): s.r|=R[0]
            if op.startswith('v_add_co') or op.startswith('v_addc_co') or op.startswith('v_sub_co') or op.startswith('v_mad_u64'):
                s.w|=R[1]; s.r=set().union(*R[2:])
            if op.startswith('v_cmpx'): s.w|={'exec'}
            if op.startswith('v_cndmask') and len(R)==3: s.r|={'vcc'}
            if s.dpp: s.r|=R[0]
        elif op.startswith('buffer_') or op.startswith('global_') or op.startswith('flat_'):
            s.kind='vmem'
            isl = 'load' in op
            lds = re.search(r'\blds\b', t) is not None or '_lds_' in op
            if op in ('buffer_wbl2','buffer_inv'): pass
            elif isl and lds: s.r=allr; s.lds_dma=True
            elif isl: s.w=R[0]; s.r=set().union(*R[1:])
            else:
                s.r=allr
                if 'atomic' in op and 'sc0' in t:
                    s.w = R[0]
                d = R[0] if op.startswith('buffer_') else R[1]
                s.storedata=d; s.wide = ('x3' in op or 'x4' in op)
        elif op.startswith('ds_'):
            s.kind='ds'
            if 'read' in op or 'permute' in op or 'swizzle' in op or 'rtn' in op: s.w=R[0]; s.r=set().union(*R[1:]) if len(R)>1 else set()
            else: s.r=allr
        elif op.startswith('s_'):
            s.kind='salu'
            if op.startswith('s_cmp') or op.startswith('s_bitcmp') : s.r=allr
            elif op.startswith('s_cbranch') or op in('s_branch','s_waitcnt','s_barrier','s_endpgm','s_setprio','s_sleep'): pass
            else:
                s.w=set(R[0]) if R else set(); s.r=set().union(*R[1:]) if len(R)>1 else set()
                if 'saveexec' in op: s.w|={'exec'}
    def is_trans(s): return any(s.op.startswith(x) for x in TRANS)

def isv(r): return r[0] in 'va' and r!='vcc'
def need(p, c):
    n=0
    pv={r for r in p.w if isv(r)}
    ps={r for r in p.w if not isv(r)}
    if p.kind=='valu':
        if c.kind=='mfma' and pv & c.r: n=max(n,2)
        if c.kind=='valu':
            if p.is_trans() and not c.is_trans() and pv & c.r: n=max(n,1)
            if p.is_trans() and c.is_trans() and pv & c.r: n=max(n,1)
            if ('permlane' in c.op or c.dpp) and pv & c.r: n=max(n,2)
            if (c.op.startswith('v_readlane') or c.op.startswith('v_readfirstlane')) and pv & c.r: n=max(n,1)
            if ps & c.r:
                n=max(n, 4 if ('lane' in c.op) else 2)
            if 'exec' in ps: n=max(n,5 if c.dpp else 4)
        if c.kind=='mfma' and 'exec' in ps: n=max(n,4)
        if c.kind=='vmem' and ps & c.r: n=max(n,5)
        if c.kind=='salu' and ps & c.r: n=max(n,1)
        if p.is_trans() and c.kind in('vmem','ds') and pv & c.r: n=max(n,1)
    if p.kind=='mfma':
        big={2:5,4:8,8:12,16:20}[p.passes]
        if c.kind=='mfma':
            if p.w & (c.A|c.B): n=max(n,big)
            if p.w & c.C:
                if p.w==c.C and p.passes==c.passes: n=max(n, 2 if p.passes==2 else 0)
                else: n=max(n,{2:4,4:6,8:10,16:18}[p.passes])
            elif p.w & c.w: n=max(n,big)
        elif c.kind in('valu','vmem','ds'):
            if p.w & (c.r|c.w): n=max(n,big)
        if c.kind=='valu' and p.C & c.w: n=max(n,{2:1,4:3,8:7,16:15}[p.passes])
    if p.kind=='vmem' and p.wide and p.storedata & c.w: n=max(n,2)
    if p.kind=='salu' and 'm0' in p.w and (c.lds_dma or 'addtid' in c.op): n=max(n,1)
    return n

class Asm:
    def __init__(s): s.items=[]
    def __call__(s, text):
        for line in text.split('\n'):
            line=line.strip()
            if not line: continue
            if line.startswith(';') or line.startswith('.') or line.endswith(':'): s.items.append(('raw',line))
            else: s.items.append(('ins',Ins(line)))
    def raw(s,t): s.items.append(('raw',t))
    def render(s, verbose=False):
        out=[]; hist=[]
        nn=0
        for k,it in s.items:
            if k=='raw':
                out.append(it); continue
            req=0; dist=0
            for p in reversed(hist):
                if dist>=20: break
                r=need(p,it)-dist
                if r>req: req=r
                dist+=p.ws
            if req>0:
                nopi=Ins('s_nop %d'%(req-1)); hist.append(nopi); out.append('    s_nop %d ; auto'%(req-1)); nn+=req
            hist.append(it); out.append('    '+it.text)
        if verbose: print('auto nop states:',nn)
        return '\n'.join(out)+'\n'
```

```python
import sys, struct
from asmlib import Asm
KN='standalone__gqa_softmax__sampling_kernel'
HDR_COMMENT = """; GQA decode attention (B=8,Hq=32,Hkv=8,Sq=8,Sk=2048,D=128), split-KV x4 with in-launch tagged all-to-all combine.
"""
def f2u(x): return struct.unpack('<I',struct.pack('<f',x))[0]
C_SCALE = f2u(1.4426950408889634*0.08838834764831845)
EPOCH_OFF=0; ML_OFF=0x10000; IN_OFF=0x100000
TAGM=0x3FF; TAGB=10
OOB=0xF0000000

class VQ:
    def __init__(s,a): s.a=a; s.q=[]
    def issue(s,label,text): s.a(text); s.q.append(label)
    def wait(s,label):
        idx=max(i for i,l in enumerate(s.q) if l==label)
        n=len(s.q)-1-idx
        assert n<=63
        s.a(f"s_waitcnt vmcnt({n})")

def gen(stamps=False, pol='nt', qpol='', qpos=2, sleep=0, spin_max=20000):
    a=Asm(); vq=VQ(a)
    nst=[0]
    def stamp():
        if stamps:
            k=nst[0]; nst[0]+=1
            assert k<12
            a(f"s_memrealtime s[{64+2*k}:{65+2*k}]")
    so=lambda i: '0' if i==0 else f's{39+i}'
    vKo=[1,2,3,4]; vVo=[5,6]; vQo=7; vKr=[8,9,10,11]; vVr=[[12,13],[14,15],[16,17]]
    vPw=[18,19]; vPr=[20,21]; vMw=22; vMr=23; vT=24; vSt=[25,26]; vLd=27; vMl=28; vMlSt=29; vOut=30; vEo=31
    vl=32; vq_=33; vg=34; vw=35; t0=36; t1=37; t2=38; t3=39
    vS=40
    vKf=104
    vAcc=120
    vL=136
    vOnes=144
    vM=148
    vX=152
    vVf=168
    NV=184
    aQ=0
    aP=32
    NA=160
    S=lambda tq,t: vS+(t*2+tq)*4
    acc=lambda tq,u: vAcc+(tq*2+u)*4
    r4=lambda p,b: f"{p}[{b}:{b+3}]"
    r2=lambda p,b: f"{p}[{b}:{b+1}]"

    stamp()
    a(f"""s_cmp_ge_u32 s2, 256
    s_cbranch_scc1 L_end
    s_load_dwordx2 s[8:9], s[0:1], 8
    s_load_dwordx2 s[4:5], s[0:1], 0
    s_load_dwordx2 s[12:13], s[0:1], 16
    s_load_dwordx2 s[16:17], s[0:1], 24
    s_load_dwordx2 s[20:21], s[0:1], 40
    v_lshrrev_b32 v{vw}, 6, v0
    v_and_b32 v{vl}, 63, v0
    s_and_b32 s24, s2, 7
    s_lshr_b32 s3, s2, 5
    v_readfirstlane_b32 s26, v{vw}
    s_lshl_b32 s3, s3, 3
    s_or_b32 s24, s24, s3
    s_bfe_u32 s25, s2, 0x20003
    s_lshl_b32 s3, s24, 2
    s_or_b32 s3, s3, s25
    s_lshl_b32 s31, s3, 17
    s_lshl_b32 s27, s26, 15
    s_add_u32 s31, s31, s27
    v_and_b32 v{vq_}, 15, v{vl}
    v_lshrrev_b32 v{vg}, 4, v{vl}
    v_xor_b32 v{t0}, v{vq_}, v{vg}
    v_lshlrev_b32 v{t0}, 4, v{t0}
    v_lshl_add_u32 v{t1}, v{vg}, 8, s31
    v_add_u32 v{vKo[0]}, v{t0}, v{t1}
    v_xor_b32 v{vKo[1]}, 64, v{vKo[0]}
    v_xor_b32 v{vKo[2]}, 0x80, v{vKo[0]}
    v_xor_b32 v{vKo[3]}, 0xc0, v{vKo[0]}
    s_mov_b32 s10, 0x2000000
    s_mov_b32 s11, 0x20000
    s_mov_b32 m0, s27
    s_movk_i32 s40, 0x1000
    s_mov_b32 s6, 0x80000
    s_mov_b32 s7, 0x20000
    s_lshl_b32 s32, s24, 13
    v_lshl_add_u32 v{vQo}, v{vq_}, 8, s32
    v_lshl_add_u32 v{vQo}, v{vg}, 4, v{vQo}
    s_waitcnt lgkmcnt(0)
    """)
    stamp()
    def kdma(t):
        if t>0: a(f"s_add_u32 m0, s27, {t*4096}")
        for i in range(4):
            vq.issue(f'K{t}', f"buffer_load_dwordx4 v{vKo[i]}, s[8:11], {so(t)} offen offset:{i*1024} {pol} lds")
    def vdma(c):
        if c<2: a(f"s_add_u32 m0, s28, {c*4096}")
        elif c==2: a(f"s_mov_b32 m0, s27")
        else: a(f"s_add_u32 m0, s27, {(c-2)*4096}")
        for i in range(4):
            vq.issue(f'V{c}', f"buffer_load_dwordx4 v{vVo[i&1]}, s[12:15], {so(c)} offen offset:{i*1024} {pol} lds")
    def qload():
        for tq in range(2):
            for j in range(4):
                vq.issue('Q', f"buffer_load_dwordx4 {r4('a',aQ+(tq*4+j)*4)}, v{vQo}, s[4:7], {so(tq)} offen offset:{j*64} {qpol}")
    for t in range(8):
        if t==qpos: qload()
        if t==2:
            for k in range(2,8): a(f"s_movk_i32 s{39+k}, {4096*k}")
        kdma(t)
    a(f"""v_lshlrev_b32 v{t0}, 1, v{vg}
    v_xor_b32 v{t0}, v{vq_}, v{t0}
    v_lshl_add_u32 v{vVo[0]}, v{t0}, 4, v{t1}
    v_xor_b32 v{vVo[1]}, 0x80, v{vVo[0]}
    s_mov_b32 s14, 0x2000000
    s_mov_b32 s15, 0x20000
    s_lshl_b32 s28, s26, 13
    s_add_u32 s28, s28, 0x20000
    """)
    vdma(0); vdma(1)
    a(f"""s_mov_b32 s22, 0x10000000
    s_mov_b32 s23, 0x20000
    s_lshl_b32 s33, s24, 7
    v_mov_b32 v{vEo}, s33
    """)
    vq.issue('E', f"buffer_load_dword v{vT}, v{vEo}, s[20:23], 0 offen sc1")
    stamp()
    a(f"""s_mov_b32 s18, 0x80000
    s_mov_b32 s19, 0x20000
    s_mov_b32 s29, {C_SCALE:#x}
    s_mov_b32 s30, {0xFFFFFFFF ^ TAGM:#x}
    v_xor_b32 v{t0}, v{vq_}, v{vg}
    v_lshlrev_b32 v{t0}, 4, v{t0}
    v_lshl_add_u32 v{t0}, v{vq_}, 8, v{t0}
    v_add_u32 v{vKr[0]}, s27, v{t0}
    v_xor_b32 v{vKr[1]}, 64, v{vKr[0]}
    v_xor_b32 v{vKr[2]}, 0x80, v{vKr[0]}
    v_xor_b32 v{vKr[3]}, 0xc0, v{vKr[0]}
    v_lshrrev_b32 v{t0}, 2, v{vl}
    v_and_b32 v{t2}, 7, v{t0}
    s_lshl_b32 s3, s26, 1
    v_xor_b32 v{t2}, s3, v{t2}
    v_lshlrev_b32 v{t2}, 5, v{t2}
    v_lshl_add_u32 v{t2}, v{t0}, 8, v{t2}
    v_and_b32 v{t0}, 3, v{vl}
    v_lshl_add_u32 v{vVr[0][0]}, v{t0}, 3, v{t2}
    v_xor_b32 v{vVr[0][1]}, 32, v{vVr[0][0]}
    v_add_u32 v{vVr[1][0]}, 0x10000, v{vVr[0][0]}
    v_add_u32 v{vVr[1][1]}, 0x10000, v{vVr[0][1]}
    v_add_u32 v{vVr[2][0]}, 0x20000, v{vVr[0][0]}
    v_add_u32 v{vVr[2][1]}, 0x20000, v{vVr[0][1]}
    v_lshlrev_b32 v{vPr[0]}, 4, v{vl}
    v_add_u32 v{vPr[1]}, 0x10000, v{vPr[0]}
    s_and_b32 s3, s26, 1
    s_lshl_b32 s3, s3, 3
    s_lshr_b32 s34, s26, 1
    s_lshl_b32 s34, s34, 11
    s_add_u32 s3, s3, s34
    v_add_u32 v{vPw[0]}, s3, v{vPr[0]}
    v_add_u32 v{vPw[1]}, s3, v{vPr[1]}
    v_lshlrev_b32 v{vMr}, 3, v{vq_}
    v_add_u32 v{vMw}, s27, v{vMr}
    v_and_b32 v{t0}, 7, v{vq_}
    v_lshl_add_u32 v{t0}, v{vg}, 3, v{t0}
    v_lshlrev_b32 v{t0}, 4, v{t0}
    s_lshl_b32 s3, s24, 16
    s_lshl_b32 s34, s26, 10
    s_add_u32 s3, s3, s34
    s_add_u32 s3, s3, {IN_OFF:#x}
    v_add_u32 v{t0}, s3, v{t0}
    s_lshl_b32 s34, s25, 14
    v_add_u32 v{vLd}, s34, v{t0}
    s_lshl_b32 s34, s25, 12
    v_add_u32 v{t0}, s34, v{t0}
    v_lshrrev_b32 v{t2}, 3, v{vq_}
    v_lshl_add_u32 v{vSt[0]}, v{t2}, 14, v{t0}
    v_add_u32 v{vSt[1]}, 0x8000, v{vSt[0]}
    v_mov_b32 v{t3}, {OOB:#x}
    v_cmp_eq_u32 vcc, s25, v{t2}
    v_cndmask_b32 v{vSt[0]}, v{vSt[0]}, v{t3}, vcc
    v_add_u32 v{t2}, 2, v{t2}
    v_cmp_eq_u32 vcc, s25, v{t2}
    v_cndmask_b32 v{vSt[1]}, v{vSt[1]}, v{t3}, vcc
    s_add_u32 s35, s25, 1
    s_and_b32 s35, s35, 3
    s_lshl_b32 s35, s35, 12
    s_add_u32 s36, s25, 2
    s_and_b32 s36, s36, 3
    s_lshl_b32 s36, s36, 12
    s_add_u32 s37, s25, 3
    s_and_b32 s37, s37, 3
    s_lshl_b32 s37, s37, 12
    v_add_u32 v{t0}, s25, v{vg}
    v_and_b32 v{t0}, 3, v{t0}
    v_lshlrev_b32 v{t0}, 9, v{t0}
    v_lshl_add_u32 v{t0}, v{vq_}, 4, v{t0}
    s_lshl_b32 s3, s24, 11
    s_add_u32 s3, s3, {ML_OFF:#x}
    s_lshr_b32 s38, s25, 1
    s_lshl_b32 s34, s38, 8
    s_add_u32 s34, s34, s3
    v_add_u32 v{vMl}, s34, v{t0}
    s_lshl_b32 s34, s25, 9
    s_add_u32 s34, s34, s3
    v_lshl_add_u32 v{vMlSt}, v{vl}, 4, s34
    v_cmp_le_u32 vcc, 32, v0
    v_cndmask_b32 v{vMlSt}, v{vMlSt}, v{t3}, vcc
    s_lshl_b32 s3, s38, 12
    s_add_u32 s3, s3, s32
    s_lshl_b32 s34, s26, 6
    s_add_u32 s3, s3, s34
    v_lshl_add_u32 v{vOut}, v{vq_}, 8, s3
    v_lshl_add_u32 v{vOut}, v{vg}, 3, v{vOut}
    v_mov_b32 v{vOnes}, 0x3f803f80
    v_mov_b32 v{vOnes+1}, 0x3f803f80
    v_mov_b32 v{vOnes+2}, 0x3f803f80
    v_mov_b32 v{vOnes+3}, 0x3f803f80
    """)
    for t in range(8):
        if t==0 and qpos>0: vq.wait('Q')
        else: vq.wait(f'K{t}')
        if t==0: stamp()
        for j in range(4):
            a(f"ds_read_b128 {r4('v',vKf+4*j)}, v{vKr[j]} offset:{t*4096}")
        a("s_waitcnt lgkmcnt(0)")
        if t<6: vdma(t+2)
        for j in range(4):
            for tq in range(2):
                c = '0' if j==0 else r4('v',S(tq,t))
                a(f"v_mfma_f32_16x16x32_bf16 {r4('v',S(tq,t))}, {r4('v',vKf+4*j)}, {r4('a',aQ+(tq*4+j)*4)}, {c}")
    stamp()
    for tq in range(2):
        vals=[S(tq,t)+r for t in range(8) for r in range(4)]
        m=vM+tq
        a(f"v_max3_f32 v{m}, v{vals[0]}, v{vals[1]}, v{vals[2]}")
        i=3
        while i<31:
            a(f"v_max3_f32 v{m}, v{m}, v{vals[i]}, v{vals[i+1]}"); i+=2
        a(f"v_max_f32 v{m}, v{m}, v{vals[31]}")
    for sw in ('16','32'):
        for tq in range(2): a(f"v_mov_b32 v{vX+tq}, v{vM+tq}")
        for tq in range(2): a(f"v_permlane{sw}_swap_b32 v{vX+tq}, v{vM+tq}")
        for tq in range(2): a(f"v_max_f32 v{vM+tq}, v{vM+tq}, v{vX+tq}")
    vq.wait('E')
    a(f"""ds_write_b64 v{vMw}, {r2('v',vM)} offset:24576
    s_waitcnt lgkmcnt(0)
    s_barrier
    ds_read2st64_b64 {r4('v',vX)}, v{vMr} offset0:48 offset1:112
    ds_read2st64_b64 {r4('v',vX+4)}, v{vMr} offset0:176 offset1:240
    v_add_u32 v{vEo+0 if False else t0}, 1, v{vT}
    v_and_b32 v{vT}, {TAGM:#x}, v{t0}
    s_waitcnt lgkmcnt(0)
    v_max3_f32 v{vM}, v{vX}, v{vX+2}, v{vX+4}
    v_max3_f32 v{vM+1}, v{vX+1}, v{vX+3}, v{vX+5}
    v_max_f32 v{vM}, v{vM}, v{vX+6}
    v_max_f32 v{vM+1}, v{vM+1}, v{vX+7}
    v_mul_f32 v{vM+2}, s29, v{vM}
    v_mul_f32 v{vM+3}, s29, v{vM+1}
    """)
    vEp=t0
    for t in range(8):
        for tq in range(2):
            b=S(tq,t)
            for r in range(4): a(f"v_fma_f32 v{b+r}, v{b+r}, s29, -v{vM+2+tq}")
            for r in range(4): a(f"v_exp_f32 v{b+r}, v{b+r}")
        for tq in range(2):
            b=S(tq,t)
            a(f"v_cvt_pk_bf16_f32 v{b}, v{b}, v{b+1}")
            a(f"v_cvt_pk_bf16_f32 v{b+1}, v{b+2}, v{b+3}")
    a("s_barrier")
    for t in range(8):
        for tq in range(2):
            off=(t>>1)*32768+24576+(4*(t&1)+tq)*1024
            a(f"ds_write_b64 v{vPw[off>>16]}, {r2('v',S(tq,t))} offset:{off&0xffff}")
    a("""s_waitcnt lgkmcnt(0)
    s_barrier""")
    P=lambda c,p,tq: aP+((c*2+p)*2+tq)*4
    for c in range(8):
        for p in range(2):
            for tq in range(2):
                i=4*c+2*p+tq
                off=(i>>3)*32768+24576+(i&7)*1024
                a(f"ds_read_b128 {r4('a',P(c,p,tq))}, v{vPr[off>>16]} offset:{off&0xffff}")
        if c%2==1:
            a("s_waitcnt lgkmcnt(0)")
            for cc in (c-1,c):
                for p in range(2):
                    for tq in range(2):
                        first = (cc==0 and p==0)
                        a(f"v_mfma_f32_16x16x32_bf16 {r4('v',vL+4*tq)}, {r4('v',vOnes)}, {r4('a',P(cc,p,tq))}, {'0' if first else r4('v',vL+4*tq)}")
    a(f"""v_cmp_le_u32 vcc, 16, v{vl}
    v_cndmask_b32 v{t1}, v{vM+2}, v{vM+3}, vcc
    v_cndmask_b32 v{t2}, v{vL}, v{vL+4}, vcc
    v_and_or_b32 v{vX}, v{t1}, s30, v{vT}
    v_lshl_or_b32 v{vX+1}, v{t1}, {TAGB}, v{vT}
    v_and_or_b32 v{vX+2}, v{t2}, s30, v{vT}
    v_lshl_or_b32 v{vX+3}, v{t2}, {TAGB}, v{vT}
    """)
    vq.issue('ML', f"buffer_store_dwordx4 {r4('v',vX)}, v{vMlSt}, s[20:23], 0 offen sc1")
    stamp()
    for c in range(8):
        vq.wait(f'V{c}')
        a("s_barrier")
        if c==7: stamp()
        for p in range(2):
            for u in range(2):
                for h in range(2):
                    w_=2*p+h
                    off = (131072+w_*8192+c*4096) if c<2 else (w_*32768+(c-2)*4096)
                    a(f"ds_read_b64_tr_b16 {r2('v',vVf+(p*2+u)*4+2*h)}, v{vVr[off>>16][u]} offset:{off&0xffff}")
        for p in range(2):
            a(f"s_waitcnt lgkmcnt({4*(1-p)})")
            for u in range(2):
                for tq in range(2):
                    first=(c==0 and p==0)
                    a(f"v_mfma_f32_16x16x32_bf16 {r4('v',acc(tq,u))}, {r4('v',vVf+(p*2+u)*4)}, {r4('a',P(c,p,tq))}, {'0' if first else r4('v',acc(tq,u))}")
    vY=vS
    for u in range(2):
        for tq in range(2):
            b=vY+(tq*2+u)*4
            for r in range(4): a(f"v_and_or_b32 v{b+r}, v{acc(tq,u)+r}, s30, v{vT}")
            a(f"buffer_store_dwordx4 {r4('v',b)}, v{vSt[tq]}, s[20:23], 0 offen offset:{u*512} sc1")
    stamp()
    vI=vS+16
    vMq=vI+24
    vOwn=vMq+4
    assert vOwn+8<=vS+64
    a(f"""s_bitcmp1_b32 s25, 0
    s_mov_b32 s48, 0x00ff00ff
    s_cselect_b32 s50, 0xff00ff00, s48
    s_mov_b32 s51, s50
    s_cmp_eq_u32 s38, 1
    s_cselect_b64 s[52:53], -1, 0
    s_mov_b32 s49, {spin_max}
    s_mov_b64 exec, s[50:51]
    L_poll:
    buffer_load_dwordx4 {r4('v',vMq)}, v{vMl}, s[20:23], 0 offen sc1
    """)
    for k in range(3):
        for u in range(2):
            a(f"buffer_load_dwordx4 {r4('v',vI+(k*2+u)*4)}, v{vLd}, s[20:23], s{35+k} offen offset:{u*512} sc1")
    for u in range(2):
        for r in range(4):
            a(f"v_cndmask_b32 v{vOwn+u*4+r}, v{acc(0,u)+r}, v{acc(1,u)+r}, s[52:53]")
    a("s_waitcnt vmcnt(0)")
    n=28
    for i in range(0,n,2):
        a(f"v_xor_b32 v{vX}, v{vI+i}, v{vT}")
        a(f"v_xor_b32 v{vX+1}, v{vI+i+1}, v{vT}")
        if i==0: a(f"v_or_b32 v{vX+2}, v{vX}, v{vX+1}")
        else: a(f"v_or3_b32 v{vX+2}, v{vX}, v{vX+1}, v{vX+2}")
    a(f"""v_and_b32 v{vX+2}, {TAGM:#x}, v{vX+2}
    v_cmp_ne_u32 vcc, 0, v{vX+2}
    s_cbranch_vccz L_got
    s_sub_u32 s49, s49, 1
    s_cmp_lg_u32 s49, 0
    """)
    if sleep: a(f"s_sleep {sleep}")
    a(f"""s_cbranch_scc1 L_poll
    L_got:
    """)
    stamp()
    mc=vX; l=vX+1
    a(f"""v_bfe_u32 v{vX+2}, v{vMq+1}, {TAGB}, {TAGB}
    v_bfe_u32 v{vX+3}, v{vMq+3}, {TAGB}, {TAGB}
    v_and_or_b32 v{mc}, v{vMq}, s30, v{vX+2}
    v_and_or_b32 v{l}, v{vMq+2}, s30, v{vX+3}
    v_mov_b32 v{vX+2}, v{mc}
    v_mov_b32 v{vX+3}, v{mc}
    v_permlane16_swap_b32 v{vX+2}, v{vX+3}
    v_max_f32 v{vX+2}, v{vX+2}, v{vX+3}
    v_mov_b32 v{vX+3}, v{vX+2}
    v_permlane32_swap_b32 v{vX+2}, v{vX+3}
    v_max_f32 v{vX+2}, v{vX+2}, v{vX+3}
    v_sub_f32 v{mc}, v{mc}, v{vX+2}
    v_exp_f32 v{mc}, v{mc}
    v_mul_f32 v{l}, v{l}, v{mc}
    v_mov_b32 v{vX+3}, v{l}
    v_permlane16_swap_b32 v{l}, v{vX+3}
    v_add_f32 v{l}, v{l}, v{vX+3}
    v_mov_b32 v{vX+3}, v{l}
    v_permlane32_swap_b32 v{l}, v{vX+3}
    v_add_f32 v{l}, v{l}, v{vX+3}
    v_rcp_f32 v{l}, v{l}
    v_mul_f32 v{vX+4}, v{mc}, v{l}
    v_mov_b32 v{vX+5}, v{vX+4}
    v_permlane16_swap_b32 v{vX+4}, v{vX+5}
    v_mov_b32 v{vX+6}, v{vX+4}
    v_mov_b32 v{vX+7}, v{vX+5}
    v_permlane32_swap_b32 v{vX+4}, v{vX+6}
    v_permlane32_swap_b32 v{vX+5}, v{vX+7}
    """)
    f=[vX+4,vX+5,vX+6,vX+7]
    for u in range(2):
        for r in range(4): a(f"v_mul_f32 v{vOwn+u*4+r}, v{vOwn+u*4+r}, v{f[0]}")
        for k in range(3):
            for r in range(4): a(f"v_fmac_f32 v{vOwn+u*4+r}, v{vI+(k*2+u)*4+r}, v{f[k+1]}")
        a(f"v_cvt_pk_bf16_f32 v{vOwn+u*4}, v{vOwn+u*4}, v{vOwn+u*4+1}")
        a(f"v_cvt_pk_bf16_f32 v{vOwn+u*4+1}, v{vOwn+u*4+2}, v{vOwn+u*4+3}")
        a(f"buffer_store_dwordx2 {r2('v',vOwn+u*4)}, v{vOut}, s[16:19], 0 offen offset:{u*32}")
    a(f"""s_or_b32 s3, s25, s26
    s_cmp_lg_u32 s3, 0
    s_cbranch_scc1 L_noep
    s_mov_b64 exec, 1
    buffer_store_dword v{vEp}, v{vEo}, s[20:23], 0 offen sc1
    L_noep:
    """)
    if stamps:
        a("s_waitcnt vmcnt(0)")
        stamp()
        a(f"""s_mov_b64 exec, 1
        s_lshl_b32 s3, s2, 2
        s_add_u32 s3, s3, s26
        s_lshl_b32 s3, s3, 7
        s_add_u32 s3, s3, 0x8000000
        v_mov_b32 v1, s3
        s_waitcnt lgkmcnt(0)""")
        for k in range(nst[0]):
            a(f"""v_mov_b32 v2, s{64+2*k}
            v_mov_b32 v3, s{65+2*k}
            buffer_store_dwordx2 v[2:3], v1, s[20:23], 0 offen offset:{8*k}
            s_nop 1""")
        a("""s_getreg_b32 s50, hwreg(HW_REG_XCC_ID)
        s_getreg_b32 s51, hwreg(HW_REG_HW_ID)
        v_mov_b32 v2, s50
        v_mov_b32 v3, s51
        buffer_store_dwordx2 v[2:3], v1, s[20:23], 0 offen offset:120""")
    a("L_end:")
    a("s_endpgm")
    hdr=f"""{HDR_COMMENT}; @launch grid=(256,1,1) block=(256,1,1) lds=163840
.amdgcn_target "amdgcn-amd-amdhsa--gfx950"
.text
.globl {KN}
.p2align 8
.type {KN},@function
{KN}:
"""
    ftr=f""".section .rodata,"a"
.p2align 6
.amdhsa_kernel {KN}
  .amdhsa_next_free_vgpr {NV+NA}
  .amdhsa_next_free_sgpr 96
  .amdhsa_accum_offset {NV}
  .amdhsa_group_segment_fixed_size 0
  .amdhsa_kernarg_size 48
  .amdhsa_user_sgpr_count 2
  .amdhsa_user_sgpr_kernarg_segment_ptr 1
  .amdhsa_system_sgpr_workgroup_id_x 1
.end_amdhsa_kernel
"""
    return hdr+a.render()+ftr
if __name__=='__main__':
    open('d2.s','w').write(gen())
    open('d2_st.s','w').write(gen(stamps=True))
    open('d2_qnt.s','w').write(gen(qpol='nt'))
    open('d2_qnt_st.s','w').write(gen(qpol='nt',stamps=True))
    open('d2_def.s','w').write(gen(pol=''))
```

```python
import sys, struct
from asmlib import Asm
KN='standalone__gqa_softmax__sampling_kernel'
HDR_COMMENT = """; GQA decode attention (B=8,Hq=32,Hkv=8,Sq=8,Sk=2048,D=128), split-KV x4.
"""
def f2u(x): return struct.unpack('<I',struct.pack('<f',x))[0]
C_SCALE = f2u(1.4426950408889634*0.08838834764831845)
XB_OFF=1024; EP_OFF=1536
TAGM=0x3FF; TAGB=10
OOB=0xF0000000

def gen(stamps=False, pol='nt', qpol='nt', M=32, sleep=0, spin_max=20000, outpol='', pretouch=True,
        fast=True, pad=0, lprio=3, ldpol='sc1 nt', dbgpoll=False, pf=5, mqat=4, lwarm=1, eat=2, otouch=4,
        firstpoll=True, pk=True, splitlast=True):
    a=Asm()
    nst=[0]
    def stamp():
        if stamps:
            k=nst[0]; nst[0]+=1
            assert k<12
            a(f"s_memrealtime s[{64+2*k}:{65+2*k}]")
    def stamp_out(n):
        a(f"""s_mov_b64 exec, 1
        s_lshl_b32 s3, s2, 3
        s_add_u32 s3, s3, s26
        s_lshl_b32 s3, s3, 7
        s_add_u32 s3, s3, 0x8000000
        v_mov_b32 v1, s3
        s_waitcnt lgkmcnt(0)""")
        for k in range(n):
            a(f"""v_mov_b32 v2, s{64+2*k}
            v_mov_b32 v3, s{65+2*k}
            buffer_store_dwordx2 v[2:3], v1, s[20:23], 0 offen offset:{8*k}
            s_nop 1""")
        a("""s_getreg_b32 s50, hwreg(HW_REG_XCC_ID)
        s_getreg_b32 s51, hwreg(HW_REG_HW_ID)
        v_mov_b32 v2, s50
        v_mov_b32 v3, s51
        buffer_store_dwordx2 v[2:3], v1, s[20:23], 0 offen offset:120""")
    r4=lambda p,b: f"{p}[{b}:{b+3}]"
    r2=lambda p,b: f"{p}[{b}:{b+1}]"
    vl=32; vq_=33; vg=34; t0=36; t1=37; t2=38; t3=39
    if pad: a("s_memrealtime s[90:91]")
    stamp()
    a(f"""s_cmp_ge_u32 s2, 256
    s_cbranch_scc1 L_end
    s_load_dwordx2 s[8:9], s[0:1], 8
    s_load_dwordx2 s[4:5], s[0:1], 0
    s_load_dwordx2 s[12:13], s[0:1], 16
    s_load_dwordx2 s[16:17], s[0:1], 24
    s_load_dwordx2 s[20:21], s[0:1], 40
    v_lshrrev_b32 v{t0}, 6, v0
    v_and_b32 v{vl}, 63, v0
    s_and_b32 s24, s2, 7
    s_lshr_b32 s3, s2, 5
    v_readfirstlane_b32 s26, v{t0}
    s_lshl_b32 s24, s24, 3
    s_or_b32 s24, s24, s3
    s_bfe_u32 s25, s2, 0x20003
    v_and_b32 v{vq_}, 15, v{vl}
    v_lshrrev_b32 v{vg}, 4, v{vl}
    s_lshl_b32 s32, s24, 13
    s_mov_b32 s22, 0x10000000
    s_mov_b32 s23, 0x20000
    s_cmp_lg_u32 s26, 4
    s_cbranch_scc1 L_compute
    """)
    vKo=[1,2,3,4]; vVo=[5,6]; vQo=[7,8,9,10]
    a(f"""s_lshl_b32 s31, s24, 5
    s_or_b32 s31, s31, s25
    s_lshl_b32 s31, s31, 14
    s_lshl_b32 s54, s3, 16
    v_xor_b32 v{t0}, v{vq_}, v{vg}
    v_lshlrev_b32 v{t0}, 4, v{t0}
    v_lshl_add_u32 v{t0}, v{vg}, 8, v{t0}
    v_add_u32 v{vKo[0]}, s31, v{t0}
    v_xor_b32 v{vKo[1]}, 64, v{vKo[0]}
    v_xor_b32 v{vKo[2]}, 0x80, v{vKo[0]}
    v_xor_b32 v{vKo[3]}, 0xc0, v{vKo[0]}
    v_add_u32 v{vQo[0]}, s32, v{t0}
    v_xor_b32 v{vQo[1]}, 64, v{vQo[0]}
    v_xor_b32 v{vQo[2]}, 0x80, v{vQo[0]}
    v_xor_b32 v{vQo[3]}, 0xc0, v{vQo[0]}
    s_mov_b32 s10, 0x2000000
    s_mov_b32 s11, 0x20000
    s_mov_b32 s6, 0x80000
    s_mov_b32 s7, 0x20000
    s_movk_i32 s40, 0x1000
    s_mov_b32 m0, 0
    s_mov_b32 s55, s54
    """)
    if lprio: a(f"s_setprio {lprio}")
    a("s_waitcnt lgkmcnt(0)")
    stamp()
    ops=[('K',0,w,i) for w in range(4) for i in range(4)]
    ops=ops[:4]+[('Q',tq,0,i) for tq in range(2) for i in range(4)]+ops[4:]
    ops+=[('K',t,w,i) for t in range(1,8) for w in range(4) for i in range(4)]
    ops+=[('V',c,w,i) for c in range(8) for w in range(4) for i in range(4)]
    bars=[]
    for r in range(16):
        kind,x=('K',r) if r<8 else ('V',r-8)
        if r==15 and splitlast: bars.append(ops.index((kind,x,1,3)))
        bars.append(ops.index((kind,x,3,3)))
    nb=0
    for n,(kind,x,w,i) in enumerate(ops):
        if n==M:
            a(f"""v_lshlrev_b32 v{t2}, 1, v{vg}
            v_xor_b32 v{t2}, v{vq_}, v{t2}
            v_lshlrev_b32 v{t2}, 4, v{t2}
            v_lshl_add_u32 v{t2}, v{vg}, 8, v{t2}
            v_add_u32 v{vVo[0]}, s31, v{t2}
            v_xor_b32 v{vVo[1]}, 0x80, v{vVo[0]}
            s_mov_b32 s14, 0x2000000
            s_mov_b32 s15, 0x20000
            s_lshl_b32 s42, s24, 15
            s_add_u32 s42, s42, {EP_OFF}
            s_lshr_b32 s43, s25, 1
            s_lshl_b32 s43, s43, 12
            s_add_u32 s43, s43, s32""")
        if n>=M: a(f"s_waitcnt vmcnt({M-1})")
        if i==0:
            if kind=='Q':
                a(f"s_mov_b32 m0, {131072+x*4096}")
            else:
                slot = x*16384 if kind=='K' else (131072+x*16384 if x<2 else (x-2)*16384)
                if n>0: a(f"s_mov_b32 m0, {slot+w*4096}")
                if w==0:
                    if n>0: a("s_add_u32 s54, s54, 0x10000\ns_and_b32 s54, s54, 0x70000\ns_mov_b32 s55, s54")
                else: a("s_add_u32 s55, s55, 0x1000")
        if kind=='Q': a(f"buffer_load_dwordx4 v{vQo[i]}, s[4:7], {'0' if x==0 else 's40'} offen offset:{i*1024} {qpol} lds")
        elif kind=='K': a(f"buffer_load_dwordx4 v{vKo[i]}, s[8:11], s55 offen offset:{i*1024} {pol} lds")
        else: a(f"buffer_load_dwordx4 v{vVo[i&1]}, s[12:15], s55 offen offset:{i*1024} {pol} lds")
        while nb<len(bars) and n>=M and bars[nb]<=n-M:
            a("s_barrier"); nb+=1
            if nb==lwarm:
                a("s_load_dword s56, s[20:21], s42")
                if pretouch: a("s_load_dword s57, s[16:17], s43")
    if stamps: a("s_memrealtime s[68:69]")
    while nb<len(bars):
        a(f"s_waitcnt vmcnt({len(ops)-1-bars[nb]})")
        a("s_barrier"); nb+=1
    if stamps:
        a("s_memrealtime s[70:71]")
        stamp_out(4)
    a("s_endpgm")
    nst[0]=1
    vKr=[1,2,3,4]; vVr=[[5,6],[7,8],[9,10]]; vPw=11; vPr=12; vMw=13; vMr=14; vT=15; vSt=[16,17]; vLd=18; vMl=19
    vMlSt=20; vOut=21; vEo=22; vEp=23; vXb=24; vXl=25; vPf=26; vOt=27; vM=28
    vS=40; vKf=104; vXa=120
    vAcc=40; vL=56; vOnes=64; vVf=68; vX=84; vMq=100; vI=104; vU=104+12; vY=68; vOwn=56; vF=96
    NV=128; aQ=0; aP=0; NA=128
    S=lambda tq,t: vS+(t*2+tq)*4
    acc=lambda tq,u: vAcc+(tq*2+u)*4
    a("L_compute:")
    a(f"""s_lshl_b32 s33, s24, 15
    s_add_u32 s42, s33, {EP_OFF}
    v_mov_b32 v{vEo}, s42
    s_lshl_b32 s27, s26, 12
    s_mov_b32 s18, 0x80000
    s_mov_b32 s19, 0x20000
    s_mov_b32 s29, {C_SCALE:#x}
    s_mov_b32 s30, {0xFFFFFFFF ^ TAGM:#x}
    s_getreg_b32 s39, hwreg(HW_REG_XCC_ID)
    v_xor_b32 v{t0}, v{vq_}, v{vg}
    v_lshlrev_b32 v{t0}, 4, v{t0}
    v_lshl_add_u32 v{t0}, v{vq_}, 8, v{t0}
    v_add_u32 v{vKr[0]}, s27, v{t0}
    v_xor_b32 v{vKr[1]}, 64, v{vKr[0]}
    v_xor_b32 v{vKr[2]}, 0x80, v{vKr[0]}
    v_xor_b32 v{vKr[3]}, 0xc0, v{vKr[0]}
    v_add_u32 v{vXa}, 0x20000, v{t0}
    v_xor_b32 v{vXa+1}, 64, v{vXa}
    v_xor_b32 v{vXa+2}, 0x80, v{vXa}
    v_xor_b32 v{vXa+3}, 0xc0, v{vXa}
    v_lshrrev_b32 v{t0}, 2, v{vl}
    v_and_b32 v{t2}, 7, v{t0}
    s_lshl_b32 s3, s26, 1
    v_xor_b32 v{t2}, s3, v{t2}
    v_lshlrev_b32 v{t2}, 5, v{t2}
    v_lshl_add_u32 v{t2}, v{t0}, 8, v{t2}
    v_and_b32 v{t1}, 3, v{vl}
    v_lshl_add_u32 v{vVr[0][0]}, v{t1}, 3, v{t2}
    v_xor_b32 v{vVr[0][1]}, 32, v{vVr[0][0]}
    v_add_u32 v{vVr[1][0]}, 0x10000, v{vVr[0][0]}
    v_add_u32 v{vVr[1][1]}, 0x10000, v{vVr[0][1]}
    v_add_u32 v{vVr[2][0]}, 0x20000, v{vVr[0][0]}
    v_add_u32 v{vVr[2][1]}, 0x20000, v{vVr[0][1]}
    s_add_u32 s43, s33, {XB_OFF:#x}
    v_lshl_add_u32 v{vXl}, v{t1}, 2, s43
    s_lshl_b32 s3, s25, 2
    s_add_u32 s34, s43, s3
    v_mov_b32 v{t3}, {OOB:#x}
    v_mov_b32 v{vXb}, s34
    v_cmp_ne_u32 vcc, 0, v0
    v_cndmask_b32 v{vXb}, v{vXb}, v{t3}, vcc
    s_lshr_b32 s38, s25, 1
    s_lshl_b32 s3, s38, 12
    s_add_u32 s31, s3, s32
    v_mov_b32 v{vOt}, s31
    s_add_u32 s3, s25, 1
    v_add_u32 v{vPf}, s3, v{t0}
    v_and_b32 v{vPf}, 3, v{vPf}
    v_lshlrev_b32 v{vPf}, 11, v{vPf}
    v_lshl_add_u32 v{vPf}, v{t1}, 7, v{vPf}
    s_lshl_b32 s34, s26, 9
    s_add_u32 s44, s33, s34
    s_lshl_b32 s3, s25, 13
    s_add_u32 s45, s44, s3
    v_add_u32 v{vPf}, s45, v{vPf}
    v_cmp_le_u32 vcc, 12, v{vl}
    v_cndmask_b32 v{vPf}, v{vPf}, v{t3}, vcc
    v_lshlrev_b32 v{vPr}, 4, v{vl}
    v_add_u32 v{vPr}, 0x10000, v{vPr}
    s_and_b32 s3, s26, 1
    s_lshl_b32 s3, s3, 3
    s_lshr_b32 s34, s26, 1
    s_lshl_b32 s34, s34, 11
    s_add_u32 s3, s3, s34
    v_add_u32 v{vPw}, s3, v{vPr}
    v_lshlrev_b32 v{vMr}, 3, v{vq_}
    v_add_u32 v{vMr}, 0x18000, v{vMr}
    v_add_u32 v{vMw}, s27, v{vMr}
    v_and_b32 v{t0}, 7, v{vq_}
    v_lshl_add_u32 v{t0}, v{vg}, 3, v{t0}
    v_lshlrev_b32 v{t0}, 4, v{t0}
    v_add_u32 v{vLd}, s45, v{t0}
    s_lshl_b32 s34, s25, 11
    s_add_u32 s34, s34, s44
    v_add_u32 v{t0}, s34, v{t0}
    v_lshrrev_b32 v{t2}, 3, v{vq_}
    v_lshl_add_u32 v{vSt[0]}, v{t2}, 13, v{t0}
    v_add_u32 v{vSt[1]}, 0x4000, v{vSt[0]}
    v_cmp_eq_u32 vcc, s25, v{t2}
    v_cndmask_b32 v{vSt[0]}, v{vSt[0]}, v{t3}, vcc
    v_add_u32 v{t2}, 2, v{t2}
    v_cmp_eq_u32 vcc, s25, v{t2}
    v_cndmask_b32 v{vSt[1]}, v{vSt[1]}, v{t3}, vcc
    s_add_u32 s35, s25, 1
    s_and_b32 s35, s35, 3
    s_lshl_b32 s35, s35, 11
    s_add_u32 s36, s25, 2
    s_and_b32 s36, s36, 3
    s_lshl_b32 s36, s36, 11
    s_add_u32 s37, s25, 3
    s_and_b32 s37, s37, 3
    s_lshl_b32 s37, s37, 11
    v_add_u32 v{t0}, s25, v{vg}
    v_and_b32 v{t0}, 3, v{t0}
    v_mul_u32_u24 v{t0}, 0x2800, v{t0}
    v_lshl_add_u32 v{t0}, v{vq_}, 4, v{t0}
    s_lshl_b32 s34, s38, 8
    s_add_u32 s34, s34, s33
    v_add_u32 v{vMl}, s34, v{t0}
    s_mul_i32 s34, s25, 0x2800
    s_add_u32 s34, s34, s33
    v_lshl_add_u32 v{vMlSt}, v{vl}, 4, s34
    v_cmp_le_u32 vcc, 32, v0
    v_cndmask_b32 v{vMlSt}, v{vMlSt}, v{t3}, vcc
    s_lshl_b32 s34, s26, 6
    s_add_u32 s3, s31, s34
    v_lshl_add_u32 v{vOut}, v{vq_}, 8, s3
    v_lshl_add_u32 v{vOut}, v{vg}, 3, v{vOut}
    s_and_b32 s39, s39, 0xffff
    s_lshl_b32 s39, s39, {TAGB}
    s_bitcmp1_b32 s25, 0
    s_mov_b32 s48, 0x00ff00ff
    s_cselect_b32 s50, 0xff00ff00, s48
    s_mov_b32 s51, s50
    s_cmp_eq_u32 s38, 1
    s_cselect_b64 s[52:53], -1, 0
    s_mov_b32 s49, {spin_max}
    s_mov_b32 s46, 0xffff0000
    s_waitcnt lgkmcnt(0)
    """)
    stamp()
    for t in range(8):
        a("s_barrier")
        if t==0:
            stamp()
            for tq in range(2):
                for j in range(4):
                    a(f"ds_read_b128 {r4('a',aQ+(tq*4+j)*4)}, v{vXa+j} offset:{tq*4096}")
        for j in range(4):
            a(f"ds_read_b128 {r4('v',vKf+4*j)}, v{vKr[j]} offset:{(t*16384)&0xffff}")
        if t==3:
            for j in range(4): a(f"v_add_u32 v{vKr[j]}, 0x10000, v{vKr[j]}")
        if t==eat: a(f"buffer_load_dword v{vT}, v{vEo}, s[20:23], 0 offen sc1 nt")
        if t==eat+2:
            a(f"""s_waitcnt vmcnt(0)
            v_add_u32 v{vEp}, 1, v{vT}
            v_and_b32 v{vT}, {TAGM:#x}, v{vEp}""")
        if t==eat+3:
            a(f"""v_or_b32 v{t0}, s39, v{vT}
            buffer_store_dword v{t0}, v{vXb}, s[20:23], 0 offen sc1""")
        a("s_waitcnt lgkmcnt(0)")
        for j in range(4):
            for tq in range(2):
                c = '0' if j==0 else r4('v',S(tq,t))
                a(f"v_mfma_f32_16x16x32_bf16 {r4('v',S(tq,t))}, {r4('v',vKf+4*j)}, {r4('a',aQ+(tq*4+j)*4)}, {c}")
        if t>=1:
            tl=[t-1] if t<7 else [6,7]
            for tt in tl:
                for tq in range(2):
                    b=S(tq,tt); m=vM+tq
                    if tt==0:
                        a(f"v_max3_f32 v{m}, v{b}, v{b+1}, v{b+2}")
                        a(f"v_max_f32 v{m}, v{m}, v{b+3}")
                    else:
                        a(f"v_max3_f32 v{m}, v{m}, v{b}, v{b+1}")
                        a(f"v_max3_f32 v{m}, v{m}, v{b+2}, v{b+3}")
    for sw in ('16','32'):
        for tq in range(2): a(f"v_mov_b32 v{vXa+tq}, v{vM+tq}")
        for tq in range(2): a(f"v_permlane{sw}_swap_b32 v{vXa+tq}, v{vM+tq}")
        for tq in range(2): a(f"v_max_f32 v{vM+tq}, v{vM+tq}, v{vXa+tq}")
    a(f"ds_write_b64 v{vMw}, {r2('v',vM)}")
    stamp()
    a(f"""s_waitcnt lgkmcnt(0)
    s_barrier
    ds_read2st64_b64 {r4('v',vXa)}, v{vMr} offset0:0 offset1:8
    ds_read2st64_b64 {r4('v',vXa+4)}, v{vMr} offset0:16 offset1:24
    s_waitcnt lgkmcnt(0)
    v_max3_f32 v{vM}, v{vXa}, v{vXa+2}, v{vXa+4}
    v_max3_f32 v{vM+1}, v{vXa+1}, v{vXa+3}, v{vXa+5}
    v_max_f32 v{vM}, v{vM}, v{vXa+6}
    v_max_f32 v{vM+1}, v{vM+1}, v{vXa+7}
    v_mul_f32 v{vM+2}, s29, v{vM}
    v_mul_f32 v{vM+3}, s29, v{vM+1}
    """)
    if fast: a(f"buffer_load_dword v{vXl}, v{vXl}, s[20:23], 0 offen sc1 nt")
    def pwrite(t):
        for tq in range(2):
            a(f"ds_write_b64 v{vPw}, {r2('v',S(tq,t))} offset:{32768+(4*t+tq)*1024}")
    for t in range(8):
        if t==4:
            a("s_barrier")
            for tt in range(4): pwrite(tt)
        for tq in range(2):
            b=S(tq,t)
            for r in range(4): a(f"v_fma_f32 v{b+r}, v{b+r}, s29, -v{vM+2+tq}")
            for r in range(4): a(f"v_exp_f32 v{b+r}, v{b+r}")
        for tq in range(2):
            b=S(tq,t)
            a(f"v_cvt_pk_bf16_f32 v{b}, v{b}, v{b+1}")
            a(f"v_cvt_pk_bf16_f32 v{b+1}, v{b+2}, v{b+3}")
        if t>=4: pwrite(t)
    for r in range(4): a(f"v_mov_b32 v{vXa+r}, -1")
    if fast:
        a(f"""v_or_b32 v{t0}, s39, v{vT}
        s_waitcnt vmcnt(0)
        v_cmp_ne_u32 s[40:41], v{t0}, v{vXl}
        s_nop 1
        s_cmp_lg_u64 s[40:41], 0
        s_cbranch_scc1 L_sslow""")
        for tq in range(2): a(f"buffer_store_dwordx4 {r4('v',vXa)}, v{vSt[tq]}, s[20:23], 0 offen")
        a("L_sdone:")
    else:
        for tq in range(2): a(f"buffer_store_dwordx4 {r4('v',vXa)}, v{vSt[tq]}, s[20:23], 0 offen sc1")
    a("s_waitcnt lgkmcnt(0)")
    for r in range(4): a(f"v_mov_b32 v{vOnes+r}, 0x3f803f80")
    a("s_barrier")
    stamp()
    P=lambda c,p,tq: aP+((c*2+p)*2+tq)*4
    def pread(c):
        for p in range(2):
            for tq in range(2):
                a(f"ds_read_b128 {r4('a',P(c,p,tq))}, v{vPr} offset:{32768+(4*c+2*p+tq)*1024}")
    def vread(c,p):
        for u in range(2):
            for h in range(2):
                off=(131072+c*16384 if c<2 else (c-2)*16384)+(2*p+h)*4096
                a(f"ds_read_b64_tr_b16 {r2('v',vVf+(p*2+u)*4+2*h)}, v{vVr[off>>16][u]} offset:{off&0xffff}")
    def pv(c,p,order=None):
        for u,tq in (order or [(0,0),(0,1),(1,0),(1,1)]):
            first=(c==0 and p==0)
            a(f"v_mfma_f32_16x16x32_bf16 {r4('v',acc(tq,u))}, {r4('v',vVf+(p*2+u)*4)}, {r4('a',P(c,p,tq))}, {'0' if first else r4('v',acc(tq,u))}")
    def lm(c):
        for p in range(2):
            for tq in range(2):
                first=(c==0 and p==0)
                a(f"v_mfma_f32_16x16x32_bf16 {r4('v',vL+4*tq)}, {r4('v',vOnes)}, {r4('a',P(c,p,tq))}, {'0' if first else r4('v',vL+4*tq)}")
    def chunk(c):
        vread(c,0); vread(c,1)
        a("s_waitcnt lgkmcnt(4)"); pv(c,0)
        a("s_waitcnt lgkmcnt(0)"); pv(c,1)
    pread(0); pread(1); pread(2)
    for c in range(8):
        if c+3<8: pread(c+3); a("s_waitcnt lgkmcnt(12)")
        else: a(f"s_waitcnt lgkmcnt({4*(7-c)})")
        lm(c)
    chunk(0)
    a(f"""v_cmp_le_u32 vcc, 16, v{vl}
    v_cndmask_b32 v{t1}, v{vM+2}, v{vM+3}, vcc
    v_cndmask_b32 v{t2}, v{vL}, v{vL+4}, vcc
    v_and_or_b32 v{vX}, v{t1}, s30, v{vT}
    v_lshl_or_b32 v{vX+1}, v{t1}, {TAGB}, v{vT}
    v_and_or_b32 v{vX+2}, v{t2}, s30, v{vT}
    v_lshl_or_b32 v{vX+3}, v{t2}, {TAGB}, v{vT}
    s_waitcnt vmcnt(0)
    s_barrier""")
    if fast:
        a(f"""s_cmp_lg_u64 s[40:41], 0
        s_cbranch_scc1 L_mlslow
        buffer_store_dwordx4 {r4('v',vX)}, v{vMlSt}, s[20:23], 0 offen
        L_mlst:""")
    else:
        a(f"buffer_store_dwordx4 {r4('v',vX)}, v{vMlSt}, s[20:23], 0 offen sc1")
    stamp()
    def extras(c):
        if c==mqat: a(f"buffer_load_dwordx4 {r4('v',vMq)}, v{vMl}, s[20:23], 0 offen sc1 nt")
        if c==pf: a(f"buffer_load_dword v{t0}, v{vPf}, s[20:23], 0 offen sc1 nt")
        if c==otouch: a(f"buffer_load_dword v{t1}, v{vOt}, s[16:19], 0 offen nt")
    chunk(1); chunk(2); chunk(3); extras(3)
    for c in range(4,7):
        a("s_barrier"); chunk(c); extras(c)
    younger=sum(1 for x in (pf,otouch) if x is not None and (x>mqat or (x==mqat)))
    a("s_mov_b64 exec, s[50:51]")
    a(f"s_waitcnt vmcnt({younger})")
    def weights():
        mc=vX; l=vX+1
        a(f"""v_bfe_u32 v{vX+2}, v{vMq+1}, {TAGB}, {TAGB}
        v_bfe_u32 v{vX+3}, v{vMq+3}, {TAGB}, {TAGB}
        v_and_or_b32 v{mc}, v{vMq}, s30, v{vX+2}
        v_and_or_b32 v{l}, v{vMq+2}, s30, v{vX+3}
        v_mov_b32 v{vX+2}, v{mc}
        v_mov_b32 v{vX+3}, v{mc}
        v_permlane16_swap_b32 v{vX+2}, v{vX+3}
        v_max_f32 v{vX+2}, v{vX+2}, v{vX+3}
        v_mov_b32 v{vX+3}, v{vX+2}
        v_permlane32_swap_b32 v{vX+2}, v{vX+3}
        v_max_f32 v{vX+2}, v{vX+2}, v{vX+3}
        v_sub_f32 v{mc}, v{mc}, v{vX+2}
        v_exp_f32 v{mc}, v{mc}
        v_mul_f32 v{l}, v{l}, v{mc}
        v_mov_b32 v{vX+3}, v{l}
        v_permlane16_swap_b32 v{l}, v{vX+3}
        v_add_f32 v{l}, v{l}, v{vX+3}
        v_mov_b32 v{vX+3}, v{l}
        v_permlane32_swap_b32 v{l}, v{vX+3}
        v_add_f32 v{l}, v{l}, v{vX+3}
        v_rcp_f32 v{l}, v{l}
        v_mul_f32 v{vF}, v{mc}, v{l}
        v_mov_b32 v{vF+1}, v{vF}
        v_permlane16_swap_b32 v{vF}, v{vF+1}
        v_mov_b32 v{vF+2}, v{vF}
        v_mov_b32 v{vF+3}, v{vF+1}
        v_permlane32_swap_b32 v{vF}, v{vF+2}
        v_permlane32_swap_b32 v{vF+1}, v{vF+3}
        """)
    def mlcheck(dst):
        a(f"""v_bitop3_b32 v{vX+8}, v{vMq}, v{vMq+1}, v{vT} bitop3:0x7e
        v_bitop3_b32 v{vX+9}, v{vMq+2}, v{vMq+3}, v{vT} bitop3:0x7e
        v_or_b32 v{vX+8}, v{vX+8}, v{vX+9}
        v_and_b32 v{vX+8}, {TAGM:#x}, v{vX+8}
        v_cmp_ne_u32 {dst}, 0, v{vX+8}""")
    mlcheck('s[58:59]')
    weights()
    a("s_mov_b64 exec, -1")
    def oloads():
        for k in range(3):
            a(f"buffer_load_dwordx4 {r4('v',vI+k*4)}, v{vLd}, s[20:23], s{35+k} offen {ldpol}")
    a("s_barrier")
    if splitlast:
        vread(7,0); a("s_waitcnt lgkmcnt(0)"); pv(7,0)
        a("s_barrier"); stamp()
        vread(7,1)
    else:
        stamp(); vread(7,0); vread(7,1)
    if firstpoll:
        a("s_mov_b64 exec, s[50:51]"); oloads(); a("s_mov_b64 exec, -1")
    if not splitlast:
        a("s_waitcnt lgkmcnt(4)"); pv(7,0)
    a("s_waitcnt lgkmcnt(0)"); pv(7,1,[(0,0),(1,0),(0,1),(1,1)])
    def ostores(pol_):
        for tq in range(2):
            b=vY+tq*4
            for u in range(2):
                a(f"v_cvt_pk_bf16_f32 v{b+2*u}, v{acc(tq,u)}, v{acc(tq,u)+1}")
                a(f"v_cvt_pk_bf16_f32 v{b+2*u+1}, v{acc(tq,u)+2}, v{acc(tq,u)+3}")
            a(f"buffer_store_dwordx4 {r4('v',b)}, v{vSt[tq]}, s[20:23], 0 offen {pol_}")
    if fast:
        a("""s_cmp_lg_u64 s[40:41], 0
        s_cbranch_scc1 L_slow""")
        ostores('')
        a("L_stored:")
    else:
        ostores('sc1')
    stamp()
    a("""s_mov_b64 exec, s[50:51]
    s_cmp_lg_u64 s[58:59], 0
    s_cbranch_scc1 L_mlretry""")
    if not firstpoll: oloads()
    a("L_mlok:")
    for u in range(2):
        for r in range(4):
            a(f"v_cndmask_b32 v{vOwn+u*4+r}, v{acc(0,u)+r}, v{acc(1,u)+r}, s[52:53]")
    for i in range(8): a(f"v_mul_f32 v{vOwn+i}, v{vOwn+i}, v{vF}")
    a(f"s_waitcnt vmcnt({2 if firstpoll else 0})")
    a("L_chk:")
    a(f"""v_max3_u32 v{vX}, v{vI}, v{vI+1}, v{vI+2}
    v_max3_u32 v{vX+1}, v{vI+3}, v{vI+4}, v{vI+5}
    v_max3_u32 v{vX+2}, v{vI+6}, v{vI+7}, v{vI+8}
    v_max3_u32 v{vX+3}, v{vI+9}, v{vI+10}, v{vI+11}
    v_max3_u32 v{vX}, v{vX}, v{vX+1}, v{vX+2}
    v_max_u32 v{vX}, v{vX}, v{vX+3}
    v_cmp_eq_u32 vcc, -1, v{vX}
    s_cbranch_vccnz L_retry
    L_got:""")
    stamp()
    if dbgpoll: a(f"s_sub_u32 s88, {spin_max}, s49\ns_mov_b32 s89, 0")
    for u in range(2):
        for k in range(3):
            for h in range(2):
                x=vI+k*4+2*u+h
                a(f"v_lshlrev_b32 v{vU+2*h}, 16, v{x}")
                a(f"v_and_b32 v{vU+2*h+1}, s46, v{x}")
            for r in range(4): a(f"v_fmac_f32 v{vOwn+u*4+r}, v{vU+r}, v{vF+k+1}")
        a(f"v_cvt_pk_bf16_f32 v{vOwn+u*4}, v{vOwn+u*4}, v{vOwn+u*4+1}")
        a(f"v_cvt_pk_bf16_f32 v{vOwn+u*4+1}, v{vOwn+u*4+2}, v{vOwn+u*4+3}")
        a(f"buffer_store_dwordx2 {r2('v',vOwn+u*4)}, v{vOut}, s[16:19], 0 offen offset:{u*32} {outpol}")
    a(f"""s_or_b32 s3, s25, s26
    s_cmp_lg_u32 s3, 0
    s_cbranch_scc1 L_noep
    s_mov_b64 exec, 1
    buffer_store_dword v{vEp}, v{vEo}, s[20:23], 0 offen
    L_noep:
    """)
    if pad:
        a(f"""s_waitcnt lgkmcnt(0)
        s_add_u32 s90, s90, {pad}
        L_sp:
        s_memrealtime s[92:93]
        s_waitcnt lgkmcnt(0)
        s_sub_u32 s92, s92, s90
        s_cmp_lt_i32 s92, 0
        s_cbranch_scc1 L_sp""")
    if stamps:
        a("s_waitcnt vmcnt(0)")
        stamp()
        stamp_out(nst[0])
        if dbgpoll: a("v_mov_b32 v2, s88\nv_mov_b32 v3, s89\nbuffer_store_dwordx2 v[2:3], v1, s[20:23], 0 offen offset:112")
    a("L_end:")
    a("s_endpgm")
    a("L_retry:")
    a(f"""s_sub_u32 s49, s49, 1
    s_cmp_eq_u32 s49, 0
    s_cbranch_scc1 L_got""")
    if sleep: a(f"s_sleep {sleep}")
    oloads()
    a("s_waitcnt vmcnt(0)")
    a("s_branch L_chk")
    a("L_mlretry:")
    a(f"""s_sub_u32 s49, s49, 1
    s_cmp_eq_u32 s49, 0
    s_cbranch_scc1 L_end
    buffer_load_dwordx4 {r4('v',vMq)}, v{vMl}, s[20:23], 0 offen sc1 nt
    s_waitcnt vmcnt(0)""")
    mlcheck('vcc')
    a("s_cbranch_vccnz L_mlretry")
    oloads()
    weights()
    a("s_waitcnt vmcnt(0)")
    a("s_branch L_mlok")
    if fast:
        a("L_slow:")
        a("s_nop 7")
        ostores('sc1')
        a("s_branch L_stored")
        a("L_mlslow:")
        a(f"buffer_store_dwordx4 {r4('v',vX)}, v{vMlSt}, s[20:23], 0 offen sc1")
        a("s_branch L_mlst")
        a("L_sslow:")
        for tq in range(2): a(f"buffer_store_dwordx4 {r4('v',vXa)}, v{vSt[tq]}, s[20:23], 0 offen sc1")
        a("s_branch L_sdone")
    hdr=f"""{HDR_COMMENT}; @launch grid=(256,1,1) block=(320,1,1) lds=163840
.amdgcn_target "amdgcn-amd-amdhsa--gfx950"
.text
.globl {KN}
.p2align 8
.type {KN},@function
{KN}:
"""
    ftr=f""".section .rodata,"a"
.p2align 6
.amdhsa_kernel {KN}
  .amdhsa_next_free_vgpr {NV+NA}
  .amdhsa_next_free_sgpr 96
  .amdhsa_accum_offset {NV}
  .amdhsa_group_segment_fixed_size 0
  .amdhsa_kernarg_size 48
  .amdhsa_user_sgpr_count 2
  .amdhsa_user_sgpr_kernarg_segment_ptr 1
  .amdhsa_system_sgpr_workgroup_id_x 1
.end_amdhsa_kernel
"""
    txt=a.render()
    li=txt.index('L_compute:')
    nb_l=txt[:li].count('s_barrier'); nb_c=txt[li:].count('s_barrier')
    assert nb_l==nb_c, (nb_l,nb_c)
    return hdr+txt+ftr
if __name__=='__main__':
    cfgs={'s16':dict(),'s16_st':dict(stamps=True,dbgpoll=True),'s16_pf4':dict(pf=4),'s16_pf6':dict(pf=6),'s16_pf3':dict(pf=3),
      's16_npf':dict(pf=None),'s16_nfp':dict(firstpoll=False),'s16_mq5':dict(mqat=5),'s16_m28':dict(M=28),'s16_m36':dict(M=36),'s16_nsl':dict(splitlast=False)}
    for n,c in cfgs.items(): open(n+'.s','w').write(gen(**c))
    open('names5b.txt','w').write(' '.join(n for n in cfgs if not n.endswith('_st'))+'\n')
```
